```python
import torch

def _softmax(x, axis=-1):
    return torch.softmax(x, dim=axis)
def _gelu(x):
    return torch.nn.functional.gelu(x, approximate="tanh")
def _silu(x):
    return torch.nn.functional.silu(x)
def _sigmoid(x):
    return torch.sigmoid(x)
def _layernorm(x, axis=-1, eps=1e-5):
    m = x.mean(dim=axis, keepdim=True)
    v = x.var(dim=axis, keepdim=True, unbiased=False)
    return (x - m) / torch.sqrt(v + eps)
def _scatter_add(tgt, idx, src, axis=0):
    return tgt.clone().index_add_(axis, idx, src)
def _segment_sum(src, seg, n):
    out = torch.zeros((n,) + src.shape[1:], dtype=src.dtype)
    return out.index_add_(0, seg, src)
def _pad(x, pw):
    flat = tuple(v for pair in reversed(pw) for v in pair)
    return torch.nn.functional.pad(x, flat)

kernel_name = 'gated_mix__sliding_local_dilated__dense_activation_squared_relu__prompt'

def setup_inputs():

    _w = (lambda a: (lambda t: t.to(torch.bfloat16) if t.is_floating_point() else t)(torch.as_tensor(a)))
    def _A_setup():
        B, S, D = 1, 2048, 1024
        return {
            "x": _w((lambda *s: torch.randn(*s, dtype=torch.bfloat16) * 0.05)(B, S, D)),
            "wqkv": _w((lambda *s: torch.randn(*s, dtype=torch.bfloat16) * 0.8)(D, 3 * D)),
            "wo": _w((lambda *s: torch.randn(*s, dtype=torch.bfloat16) * 0.05)(D, D)),
        }
    _A_in = _A_setup()

    def _B_setup():
        B, S, D, F = 1, 2048, 1024, 3584
        return {
            "x": _w((lambda *s: torch.randn(*s, dtype=torch.bfloat16) * 0.05)(B, S, D)),
            "w1": _w((lambda *s: torch.randn(*s, dtype=torch.bfloat16) * 0.1)(D, F)),
            "b1": _w((lambda *s: torch.randn(*s, dtype=torch.bfloat16) * 0.2)(F)),
            "w2": _w((lambda *s: torch.randn(*s, dtype=torch.bfloat16) * 0.1)(F, D)),
            "b2": _w((lambda *s: torch.randn(*s, dtype=torch.bfloat16) * 0.4)(D)),
        }
    _B_in = _B_setup()

    return {
        "A_x": _A_in["x"],
        "A_wqkv": _A_in["wqkv"],
        "A_wo": _A_in["wo"],
        "B_x": _B_in["x"],
        "B_w1": _B_in["w1"],
        "B_b1": _B_in["b1"],
        "B_w2": _B_in["w2"],
        "B_b2": _B_in["b2"],
        "gate_w": _w((lambda *s: torch.randn(*s, dtype=torch.bfloat16) * 0.05)(1024) * 16.0),
    }

def reference(A_x, A_wqkv, A_wo, B_x, B_w1, B_b1, B_w2, B_b2, gate_w):
    def _A_ref(x, wqkv, wo):
        B, S, D = x.shape
        H = 32; Dh = D // H
        W, dil = 8, 2
        qkv = (lambda x, *d: x.permute(*d))((x @ wqkv).reshape(B, S, 3, H, Dh), 2, 0, 3, 1, 4)
        q, k, v = qkv[0], qkv[1], qkv[2]
        scale = Dh ** -0.5
        pos = torch.arange(S)
        off = torch.arange(W) * dil
        idx = pos[:, None] - off[None, :]
        mask = idx >= 0
        idx_c = torch.where(mask, idx, 0).reshape(-1)
        kg = k[:, :, idx_c, :].reshape(B, H, S, W, Dh)
        vg = v[:, :, idx_c, :].reshape(B, H, S, W, Dh)
        logits = torch.einsum("bhsd,bhswd->bhsw", q, kg) * scale
        logits = torch.where(mask[None, None, :, :], logits, -1e9)
        attn = _softmax(logits, axis=-1)
        o = torch.einsum("bhsw,bhswd->bhsd", attn, vg)
        return (lambda x, *d: x.permute(*d))(o, 0, 2, 1, 3).reshape(B, S, D) @ wo

    def _B_ref(x, w1, b1, w2, b2):
        h = torch.einsum("bsd,df->bsf", x, w1) + b1
        zero = torch.zeros_like(h)
        r = torch.where(h > zero, h, zero)
        h = r * r
        out = torch.einsum("bsf,fd->bsd", h, w2) + b2
        return out

    x = A_x
    g = _sigmoid((x * gate_w).sum(-1, keepdims=True))
    a = _A_ref(x, A_wqkv, A_wo)
    b = _B_ref(x, B_w1, B_b1, B_w2, B_b2)
    return g * a + (1 - g) * b
```

```python
class Code:
    def __init__(self):
        self.L = []
        self.vm = []
        self.nlabel = 0
    def A(self, s):
        self.L.append(s)
    def ext(self, lst):
        for s in lst: self.A(s)
    def label(self, base):
        self.nlabel += 1
        return "%s_%d" % (base, self.nlabel)
    def text(self):
        return "\n".join(("    " + l if not l.endswith(":") else l) for l in self.L)

class Item:
    def __init__(self, ins, vm=None):
        self.ins = ins if isinstance(ins, list) else [ins]
        self.vm = vm

def emit_item(c, it):
    for s in it.ins: c.A(s)
    if it.vm is not None:
        c.vm.append(it.vm)

def vm_wait(c, pred):
    last = -1
    for i, t in enumerate(c.vm):
        if pred(t): last = i
    if last < 0: return
    n = len(c.vm) - 1 - last
    assert n <= 63
    c.A("s_waitcnt vmcnt(%d)" % n)
    c.vm = c.vm[last + 1:]

def interleave(c, mfmas, slots):
    def do(lst):
        for it in lst:
            if callable(it): it(c)
            elif isinstance(it, Item): emit_item(c, it)
            else: c.A(it)
    do(slots.get(-1, []))
    for i, m in enumerate(mfmas):
        c.A(m)
        do(slots.get(i, []))
    extra = [k for k in slots if k >= len(mfmas)]
    for k in sorted(extra): do(slots[k])

def spread(slots, items, g0, g1):
    n = len(items)
    if n == 0: return
    for i, it in enumerate(items):
        g = g0 + (i * (g1 - g0 + 1)) // n
        slots.setdefault(g, []).append(it)
```

```python
from core import *

WS_H = 0
WS_O = 0xE00000
WS_G = 0x1200000
WS_P = 0x1300000

def srd(c, base, ptr_s, nbytes, add=0):
    if add:
        c.A("s_add_u32 s%d, s%d, 0x%x" % (base, ptr_s, add))
        c.A("s_addc_u32 s%d, s%d, 0" % (base + 1, ptr_s + 1))
    else:
        c.A("s_mov_b32 s%d, s%d" % (base, ptr_s))
        c.A("s_mov_b32 s%d, s%d" % (base + 1, ptr_s + 1))
    c.A("s_mov_b32 s%d, 0x%x" % (base + 2, nbytes))
    c.A("s_mov_b32 s%d, 0x20000" % (base + 3))

def stamp(c, idx, opt):
    if not opt.get("stamps"): return
    c.A("s_memtime s[%d:%d]" % (60 + 4*idx, 61 + 4*idx))
    c.A("s_memrealtime s[%d:%d]" % (62 + 4*idx, 63 + 4*idx))

def stamp_out(c, n, opt, name):
    if not opt.get("stamps"): return
    A = c.A
    A("s_waitcnt vmcnt(0)")
    stamp(c, n - 1, opt)
    A("s_waitcnt lgkmcnt(0)")
    A("s_load_dwordx2 s[28:29], s[0:1], 80")
    A("s_waitcnt lgkmcnt(0)")
    srd(c, 16, 28, 0x400000, add=opt.get("stamp_off", 0))
    for i in range(n):
        A("v_mov_b32 v%d, s%d" % (4 + 2*i, 60 + 4*i))
        A("v_mov_b32 v%d, s%d" % (5 + 2*i, 62 + 4*i))
    A("s_lshl_b32 s30, s2, 2"); A("s_add_u32 s30, s30, s20"); A("s_lshl_b32 s30, s30, 6")
    A("v_mov_b32 v3, s30")
    A("v_cmp_eq_u32 vcc, 0, v1"); A("s_and_saveexec_b64 s[46:47], vcc"); A("s_cbranch_execz %s_END" % name)
    for i in range(0, 2*n, 4):
        A("buffer_store_dwordx4 v[%d:%d], v3, s[16:19], 0 offen offset:%d" % (4 + i, 7 + i, 4*i))

def ids(c):
    A = c.A
    A("v_lshrrev_b32 v2, 6, v0")
    A("v_and_b32 v1, 63, v0")
    A("v_readfirstlane_b32 s20, v2")
    A("s_and_b32 s27, s2, 7")
    A("s_lshr_b32 s30, s2, 3")
    A("s_lshr_b32 s21, s27, 1"); A("s_lshl_b32 s21, s21, 2"); A("s_lshr_b32 s31, s30, 3"); A("s_add_u32 s21, s21, s31")
    A("s_and_b32 s22, s27, 1"); A("s_lshl_b32 s22, s22, 3"); A("s_and_b32 s31, s30, 7"); A("s_add_u32 s22, s22, s31")
    A("s_and_b32 s23, s20, 1")
    A("s_lshr_b32 s24, s20, 1")

def link_dma(raw):
    items = []
    for i, (setup, ld, tag) in enumerate(raw):
        nxt = raw[i + 1][0] if i + 1 < len(raw) else []
        items.append(Item([ld] + nxt, tag))
    return raw[0][0], items

def mainloop(c, R, opt):
    A = c.A
    NST, NS, nd, nm = R.nst, R.ns, R.nd, R.nm
    raw = []
    for st in range(NST): raw += R.dma_raw(st)
    first_setup, items = link_dma(raw)
    def dma_items(st): return items[st*nd:(st+1)*nd]
    for s_ in first_setup: A(s_)
    A("s_nop 0")
    for st in range(min(NS, NST)):
        for it in dma_items(st):
            emit_item(c, it)
            if len(it.ins) > 1: A("s_nop 0")
    R.after_prologue_dma(c)
    vm_wait(c, lambda t: t == ("st", 0))
    A("s_barrier")
    stamp(c, 1, opt)
    for s in R.reads(0, 0, 0): A(s)
    pend = []
    nr = len(R.reads(0, 0, 0))
    rd_end = opt.get("rd_end", R.rd_end)
    for st in range(NST):
        slots = {-1: ["s_waitcnt lgkmcnt(0)"]}
        spread(slots, R.reads(st, 1, 1), 0, rd_end)
        spread(slots, pend, 1, nm - 1)
        pend = []
        interleave(c, R.mfmas(st, 0, 0), slots)
        slots = {-1: ["s_waitcnt lgkmcnt(0)"]}
        if st + 1 < NST:
            slots[0] = [lambda cc, st=st: vm_wait(cc, lambda t: t == ("st", st + 1)), "s_barrier"]
            spread(slots, R.reads(st + 1, 0, 0), 1, rd_end + 1)
            if st + NS < NST:
                it = dma_items(st + NS)
                nb = opt.get("nb", nd // 2)
                spread(slots, it[:nb], 2, nm - 1)
                pend = it[nb:]
        interleave(c, R.mfmas(st, 1, 1), slots)
        R.after_stage(c, st)
    stamp(c, 2, opt)

class HRound:
    SLOT = 45056; XREG = 16384
    ns = 3; nst = 16; nd = 11; nm = 28; rd_end = 17
    VD = 5; VL = 16; VB = 28; F = [56, 100]; ACC = 144
    SX, SW, SWS, SBI = 4, 8, 12, 16
    def acc(s, t, mb): return s.ACC + (t * 4 + mb) * 4
    def fx(s, fs, mb): return s.F[fs] + mb * 4
    def fw(s, fs, t): return s.F[fs] + 16 + t * 4
    def dma_raw(s, st):
        q = st % s.ns; tag = ("st", st); out = []
        for i in range(4):
            setup = ["s_add_u32 m0, s42, %d" % (q * s.SLOT), "s_mov_b32 s25, %d" % (st * 128)] if i == 0 else []
            out.append((setup, "buffer_load_dwordx4 v%d, s[%d:%d], s25 offen offset:%d lds" % (s.VD + i, s.SX, s.SX + 3, i * 1024), tag))
        for i in range(7):
            setup = []
            if i % 4 == 0: setup = ["s_add_u32 m0, s43, %d" % (q * s.SLOT + i * 1024)]
            if i == 0: setup.append("s_mov_b32 s26, %d" % (st * 64 * 7168))
            out.append((setup, "buffer_load_dwordx4 v%d, s[%d:%d], s26 offen offset:%d lds" % (s.VD + 4 + i, s.SW, s.SW + 3, (i % 4) * 1024), tag))
        return out
    def reads(s, st, kk, fs):
        q = st % s.ns
        xb = s.VL + 4*q + kk
        def wr(t):
            base = s.VL + 4*q + 2 + (t & 1); off = 32*t + kk * 32 * 448
            return ["ds_read_b64_tr_b16 v[%d:%d], v%d offset:%d" % (s.fw(fs,t), s.fw(fs,t)+1, base, off),
                    "ds_read_b64_tr_b16 v[%d:%d], v%d offset:%d" % (s.fw(fs,t)+2, s.fw(fs,t)+3, base, off + 4*448)]
        def xr(mb): return ["ds_read_b128 v[%d:%d], v%d offset:%d" % (s.fx(fs,mb), s.fx(fs,mb)+3, xb, mb * 2048)]
        r = xr(0) + wr(0) + xr(1) + xr(2) + xr(3)
        for t in range(1, 7): r += wr(t)
        return r
    def mfmas(s, st, kk, fs):
        first = st == 0 and kk == 0
        m = []
        for t in range(7):
            for mb in range(4):
                a = s.acc(t, mb)
                cs = "v[%d:%d]" % (s.VB + 4*t, s.VB + 4*t + 3) if first else "v[%d:%d]" % (a, a+3)
                m.append("v_mfma_f32_16x16x32_bf16 v[%d:%d], v[%d:%d], v[%d:%d], %s" % (a, a+3, s.fw(fs,t), s.fw(fs,t)+3, s.fx(fs,mb), s.fx(fs,mb)+3, cs))
        return m
    def after_stage(s, c, st): pass
    def after_prologue_dma(s, c):
        A = c.A
        vm_wait(c, lambda t: t == "bias")
        for t in range(7):
            for h in range(2):
                src = s.F[1] + 2*t + h
                A("v_lshlrev_b32 v%d, 16, v%d" % (s.VB + 4*t + 2*h, src))
                A("v_and_b32 v%d, 0xffff0000, v%d" % (s.VB + 4*t + 2*h + 1, src))
    def setup(s, c):
        A = c.A; VD = s.VD; VL = s.VL
        A("v_lshrrev_b32 v2, 3, v1"); A("v_and_b32 v3, 7, v1"); A("v_xor_b32 v3, v3, v2"); A("v_lshlrev_b32 v3, 4, v3")
        A("s_lshl_b32 s30, s21, 7"); A("s_lshl_b32 s31, s20, 5"); A("s_add_u32 s30, s30, s31")
        A("v_add_u32 v2, s30, v2"); A("v_lshlrev_b32 v2, 11, v2"); A("v_add_u32 v%d, v2, v3" % VD)
        for i in range(1, 4): A("v_add_u32 v%d, %d, v%d" % (VD + i, i * (8*2048 - 1024), VD))
        A("s_mul_i32 s30, s20, %d" % (7*64)); A("s_mul_i32 s31, s22, 448")
        A("s_movk_i32 s40, 2341"); A("s_movk_i32 s41, 7168")
        for i in range(7):
            A("v_add_u32 v2, s30, v1")
            if i: A("v_add_u32 v2, %d, v2" % (64 * i))
            A("v_mul_lo_u32 v3, v2, s40"); A("v_lshrrev_b32 v3, 16, v3")
            A("v_mul_u32_u24 v4, 28, v3"); A("v_sub_u32 v2, v2, v4")
            A("v_lshrrev_b32 v4, 2, v3"); A("v_and_b32 v4, 2, v4"); A("v_xor_b32 v2, v2, v4")
            A("v_lshlrev_b32 v2, 4, v2"); A("v_mul_lo_u32 v3, v3, s41")
            A("v_add_u32 v2, v2, v3"); A("v_add_u32 v2, s31, v2")
            A("v_subrev_u32 v%d, %d, v2" % (VD + 4 + i, (i % 4) * 1024))
        A("v_and_b32 v2, 15, v1"); A("v_lshrrev_b32 v3, 4, v1")
        A("v_and_b32 v4, 7, v2"); A("v_xor_b32 v4, v4, v3"); A("v_lshlrev_b32 v4, 4, v4")
        A("v_lshlrev_b32 v0, 7, v2"); A("v_add_u32 v4, v4, v0")
        A("s_lshl_b32 s30, s23, 13"); A("v_add_u32 v%d, s30, v4" % (VL + 0)); A("v_xor_b32 v%d, 64, v%d" % (VL + 1, VL + 0))
        A("v_lshlrev_b32 v4, 3, v3"); A("v_lshrrev_b32 v0, 2, v2"); A("v_add_u32 v4, v4, v0"); A("v_mul_u32_u24 v4, 448, v4")
        A("v_and_b32 v0, 3, v2"); A("v_lshlrev_b32 v0, 3, v0"); A("v_add_u32 v4, v4, v0")
        A("s_mul_i32 s30, s24, 224"); A("s_add_u32 s30, s30, %d" % s.XREG); A("v_add_u32 v4, s30, v4")
        A("v_and_b32 v0, 1, v3"); A("v_lshlrev_b32 v0, 5, v0")
        A("v_add_u32 v2, v4, v0"); A("v_sub_u32 v3, v4, v0")
        A("s_cmp_eq_u32 s24, 0"); A("s_cselect_b64 vcc, -1, 0")
        A("v_cndmask_b32 v%d, v3, v2, vcc" % (VL + 2)); A("v_cndmask_b32 v%d, v2, v3, vcc" % (VL + 3))
        for q in range(1, s.ns):
            for r in range(4): A("v_add_u32 v%d, %d, v%d" % (VL + 4*q + r, q * s.SLOT, VL + r))
        A("v_lshrrev_b32 v3, 4, v1"); A("v_lshlrev_b32 v3, 3, v3")
        A("s_mul_i32 s30, s22, 448"); A("s_mul_i32 s31, s24, 224"); A("s_add_u32 s30, s30, s31")
        A("v_add_u32 v3, s30, v3")
        for t in range(7):
            A("buffer_load_dwordx2 v[%d:%d], v3, s[%d:%d], 0 offen offset:%d" % (s.F[1] + 2*t, s.F[1] + 2*t + 1, s.SBI, s.SBI + 3, 32 * t))
            c.vm.append("bias")
        A("s_lshl_b32 s42, s20, 12")
        A("s_mul_i32 s43, s20, 7168"); A("s_add_u32 s43, s43, %d" % s.XREG)
    def epilogue(s, c, opt):
        A = c.A
        A("s_nop 7")
        A("v_lshlrev_b32 v2, 4, v1"); A("s_lshl_b32 s30, s23, 12"); A("v_add_u32 v2, s30, v2")
        A("s_mul_i32 s44, s21, %d" % (112 * 8192)); A("s_mul_i32 s30, s22, %d" % (7 * 8192)); A("s_add_u32 s44, s44, s30")
        T0 = s.F[0]
        def cvt(t, mb, dst):
            a = s.acc(t, mb)
            for r in range(4): A("v_max_f32 v%d, 0, v%d" % (a + r, a + r))
            A("v_pk_mul_f32 v[%d:%d], v[%d:%d], v[%d:%d]" % (a, a+1, a, a+1, a, a+1))
            A("v_pk_mul_f32 v[%d:%d], v[%d:%d], v[%d:%d]" % (a+2, a+3, a+2, a+3, a+2, a+3))
            A("v_cvt_pk_bf16_f32 v%d, v%d, v%d" % (dst, a, a+1))
            A("v_cvt_pk_bf16_f32 v%d, v%d, v%d" % (dst+1, a+2, a+3))
        sc = " sc1" if opt.get("sc1_store") else ""
        def store_group(pairs, singles):
            k = 0
            for (t0, t1, kc) in pairs:
                A("s_add_u32 s45, s44, %d" % (kc * 8192))
                for mb in range(4):
                    d = T0 + (k % 8) * 4; k += 1
                    cvt(t0, mb, d); cvt(t1, mb, d + 2)
                    A("buffer_store_dwordx4 v[%d:%d], v2, s[%d:%d], s45 offen offset:%d%s" % (d, d+3, s.SWS, s.SWS+3, mb * 1024, sc))
            for (t0, kc, half) in singles:
                A("s_add_u32 s45, s44, %d" % (kc * 8192 + half * 8))
                for mb in range(4):
                    d = T0 + (k % 8) * 4; k += 1
                    cvt(t0, mb, d)
                    A("buffer_store_dwordx2 v[%d:%d], v2, s[%d:%d], s45 offen offset:%d%s" % (d, d+1, s.SWS, s.SWS+3, mb * 1024, sc))
        A("s_cmp_eq_u32 s24, 0"); A("s_cbranch_scc0 H_EPI1")
        store_group([(0,1,0), (2,3,1), (4,5,2)], [(6,3,0)])
        A("s_branch H_EPI_END")
        A("H_EPI1:")
        store_group([(1,2,4), (3,4,5), (5,6,6)], [(0,3,1)])
        A("H_EPI_END:")

def gen_h(opt):
    c = Code(); A = c.A; R = HRound()
    stamp(c, 0, opt)
    A("s_cmp_ge_u32 s2, 256"); A("s_cbranch_scc1 H_END")
    A("s_load_dwordx2 s[28:29], s[0:1], 0")
    A("s_load_dwordx4 s[32:35], s[0:1], 32")
    A("s_load_dwordx2 s[38:39], s[0:1], 88")
    ids(c)
    A("s_waitcnt lgkmcnt(0)")
    srd(c, R.SX, 28, 2048*1024*2); srd(c, R.SW, 32, 1024*3584*2); srd(c, R.SWS, 38, 0x10000000); srd(c, R.SBI, 34, 3584*2)
    R.setup(c)
    mainloop(c, R, opt)
    R.epilogue(c, opt)
    stamp(c, 3, opt)
    stamp_out(c, 5, opt, "H")
    A("H_END:")
    A("s_endpgm")
    return c.text()

class QRound:
    SLOT = 45056; XREG = 18432
    ns = 3; nst = 16; nd = 11; nm = 28; rd_end = 16
    VD = 5; VL = 16; F = [56, 100]; ACC = 144
    SX, SW, SWS, SG = 4, 8, 12, 16
    def aq(s, u, mb): return s.ACC + (u * 4 + mb) * 4
    def ak(s, u, hb): return s.ACC + 32 + (u * 5 + hb) * 4
    def av(s, u, hb): return s.ACC + 72 + (u * 5 + hb) * 4
    def fx(s, fs, hb): return s.F[fs] + hb * 4
    def fw(s, fs, sec, u): return s.F[fs] + 20 + (sec * 2 + u) * 4
    def dma_raw(s, st):
        q = st % s.ns; tag = ("st", st); out = []
        for i in range(4):
            setup = []
            if i == 0: setup = ["s_add_u32 m0, s42, %d" % (q * s.SLOT), "s_mov_b32 s25, %d" % (st * 128)]
            if i == 2: setup = ["s_add_u32 m0, s42, %d" % (q * s.SLOT + 2048)]
            out.append((setup, "buffer_load_dwordx4 v%d, s[%d:%d], s25 offen offset:%d lds" % (s.VD + i, s.SX, s.SX + 3, (i & 1) * 1024), tag))
        out.append((["s_add_u32 m0, s48, %d" % (q * s.SLOT)], "buffer_load_dwordx4 v%d, s[%d:%d], s25 offen lds" % (s.VD + 4, s.SX, s.SX + 3), tag))
        for i in range(6):
            setup = []
            if i % 4 == 0: setup = ["s_add_u32 m0, s43, %d" % (q * s.SLOT + i * 1024)]
            if i == 0: setup.append("s_mov_b32 s26, %d" % (st * 64 * 6144))
            out.append((setup, "buffer_load_dwordx4 v%d, s[%d:%d], s26 offen offset:%d lds" % (s.VD + 5 + i, s.SW, s.SW + 3, (i % 4) * 1024), tag))
        return out
    def reads(s, st, kk, fs):
        q = st % s.ns
        xb = s.VL + 4*q + kk
        def wr(sec, u):
            base = s.VL + 4*q + 2 + u; off = sec * 128 + kk * 32 * 384; d = s.fw(fs, sec, u)
            return ["ds_read_b64_tr_b16 v[%d:%d], v%d offset:%d" % (d, d+1, base, off),
                    "ds_read_b64_tr_b16 v[%d:%d], v%d offset:%d" % (d+2, d+3, base, off + 4*384)]
        def xr(hb): return ["ds_read_b128 v[%d:%d], v%d offset:%d" % (s.fx(fs,hb), s.fx(fs,hb)+3, xb, hb * 2048)]
        r = xr(0) + wr(1, 0) + xr(1) + xr(2) + xr(3) + xr(4) + wr(1, 1) + wr(2, 0) + wr(2, 1) + wr(0, 0) + wr(0, 1)
        return r
    def mfmas(s, st, kk, fs):
        first = st == 0 and kk == 0
        m = []
        def mm(a, ra, rb):
            cs = "0" if first else "v[%d:%d]" % (a, a+3)
            m.append("v_mfma_f32_16x16x32_bf16 v[%d:%d], v[%d:%d], v[%d:%d], %s" % (a, a+3, ra, ra+3, rb, rb+3, cs))
        for u in range(2):
            for hb in range(5): mm(s.ak(u, hb), s.fw(fs, 1, u), s.fx(fs, hb))
        for u in range(2):
            for hb in range(5): mm(s.av(u, hb), s.fx(fs, hb), s.fw(fs, 2, u))
        for u in range(2):
            for mb in range(4): mm(s.aq(u, mb), s.fw(fs, 0, u), s.fx(fs, mb + 1))
        return m
    def after_stage(s, c, st): pass
    def after_prologue_dma(s, c):
        A = c.A
        X = s.F[1]; G = s.F[1] + 16
        vm_wait(c, lambda t: t == "gate")
        A("v_mov_b32 v2, 0"); A("v_mov_b32 v3, 0")
        for i in range(16):
            A("v_dot2_f32_bf16 v%d, v%d, v%d, v%d" % (2 + (i & 1), X + i, G + i, 2 + (i & 1)))
        A("s_nop 2")
        A("v_add_f32 v2, v2, v3")
        A("s_nop 1")
        A("v_add_f32_dpp v2, v2, v2 quad_perm:[1,0,3,2] row_mask:0xf bank_mask:0xf"); A("s_nop 1")
        A("v_add_f32_dpp v2, v2, v2 quad_perm:[2,3,0,1] row_mask:0xf bank_mask:0xf"); A("s_nop 1")
        A("v_add_f32_dpp v2, v2, v2 row_half_mirror row_mask:0xf bank_mask:0xf"); A("s_nop 1")
        A("v_add_f32_dpp v2, v2, v2 row_mirror row_mask:0xf bank_mask:0xf"); A("s_nop 1")
        A("v_mov_b32 v3, v2"); A("s_nop 1")
        A("v_permlane16_swap_b32 v2, v3"); A("s_nop 1")
        A("v_add_f32 v2, v2, v3")
        A("v_cvt_pk_bf16_f32 v2, v2, v2"); A("v_lshlrev_b32 v2, 16, v2")
        A("v_mul_f32 v2, 0xbfb8aa3b, v2")
        A("v_exp_f32 v2, v2"); A("s_nop 0")
        A("v_add_f32 v2, 1.0, v2")
        A("v_rcp_f32 v2, v2"); A("s_nop 0")
        A("v_cvt_pk_bf16_f32 v2, v2, v2"); A("v_lshlrev_b32 v2, 16, v2")
        A("v_lshrrev_b32 v3, 5, v1")
        A("s_lshl_b32 s30, s21, 7"); A("s_lshl_b32 s31, s22, 3"); A("s_add_u32 s30, s30, s31"); A("s_lshl_b32 s31, s20, 1"); A("s_add_u32 s30, s30, s31")
        A("v_add_u32 v3, s30, v3"); A("v_lshlrev_b32 v3, 2, v3")
        A("v_and_b32 v4, 31, v1"); A("v_cmp_eq_u32 vcc, 0, v4")
        A("s_and_saveexec_b64 s[46:47], vcc")
        A("s_mov_b32 s30, 0x%x" % WS_G)
        A("buffer_store_dword v2, v3, s[%d:%d], s30 offen sc1" % (s.SWS, s.SWS + 3))
        A("s_mov_b64 exec, s[46:47]")
    def setup(s, c):
        A = c.A; VD = s.VD; VL = s.VL
        X = s.F[1]; G = s.F[1] + 16
        A("v_lshrrev_b32 v2, 5, v1"); A("v_and_b32 v3, 31, v1"); A("v_lshlrev_b32 v3, 4, v3")
        A("s_lshl_b32 s30, s21, 7"); A("s_lshl_b32 s31, s22, 3"); A("s_add_u32 s30, s30, s31"); A("s_lshl_b32 s31, s20, 1"); A("s_add_u32 s30, s30, s31")
        A("v_add_u32 v2, s30, v2"); A("v_lshlrev_b32 v2, 11, v2"); A("v_add_u32 v2, v2, v3")
        for i in range(4):
            A("buffer_load_dwordx4 v[%d:%d], v2, s[%d:%d], 0 offen offset:%d" % (X + 4*i, X + 4*i + 3, s.SX, s.SX + 3, 512 * i)); c.vm.append("gate")
            A("buffer_load_dwordx4 v[%d:%d], v3, s[%d:%d], 0 offen offset:%d" % (G + 4*i, G + 4*i + 3, s.SG, s.SG + 3, 512 * i)); c.vm.append("gate")
        A("v_lshrrev_b32 v2, 3, v1"); A("v_and_b32 v3, 7, v1"); A("v_xor_b32 v3, v3, v2"); A("v_lshlrev_b32 v3, 4, v3")
        A("s_lshl_b32 s30, s21, 7"); A("s_sub_u32 s30, s30, 16"); A("s_lshl_b32 s31, s20, 5"); A("s_add_u32 s31, s30, s31")
        for i in range(4):
            A("v_add_u32 v4, s31, v2")
            if i: A("v_add_u32 v4, %d, v4" % (8 * i))
            A("v_max_i32 v4, %d, v4" % (i & 1)); A("v_lshlrev_b32 v4, 11, v4"); A("v_add_u32 v4, v4, v3")
            A("v_subrev_u32 v%d, %d, v4" % (VD + i, (i & 1) * 1024))
        A("s_lshl_b32 s31, s23, 3"); A("s_add_u32 s31, s31, 128"); A("s_add_u32 s31, s31, s30")
        A("v_add_u32 v4, s31, v2"); A("v_lshlrev_b32 v4, 11, v4"); A("v_add_u32 v%d, v4, v3" % (VD + 4))
        A("s_lshl_b32 s48, s23, 10"); A("s_add_u32 s48, s48, %d" % (128 * 128))
        A("s_mul_i32 s30, s20, %d" % (6*64)); A("s_lshl_b32 s31, s22, 7")
        A("s_movk_i32 s40, 2731"); A("s_movk_i32 s41, 6144")
        for i in range(6):
            A("v_add_u32 v2, s30, v1")
            if i: A("v_add_u32 v2, %d, v2" % (64 * i))
            A("v_mul_lo_u32 v3, v2, s40"); A("v_lshrrev_b32 v3, 16, v3")
            A("v_mul_u32_u24 v4, 24, v3"); A("v_sub_u32 v2, v2, v4")
            A("v_and_b32 v4, 2, v3"); A("v_xor_b32 v2, v2, v4")
            A("v_lshrrev_b32 v4, 1, v3"); A("v_and_b32 v4, 4, v4"); A("v_xor_b32 v2, v2, v4")
            A("v_lshrrev_b32 v4, 3, v2"); A("v_lshlrev_b32 v4, 11, v4")
            A("v_and_b32 v2, 7, v2"); A("v_lshlrev_b32 v2, 4, v2"); A("v_add_u32 v2, v2, v4")
            A("v_mul_lo_u32 v3, v3, s41"); A("v_add_u32 v2, v2, v3"); A("v_add_u32 v2, s31, v2")
            A("v_subrev_u32 v%d, %d, v2" % (VD + 5 + i, (i % 4) * 1024))
        A("v_and_b32 v2, 15, v1"); A("v_lshrrev_b32 v3, 4, v1")
        A("v_and_b32 v4, 7, v2"); A("v_xor_b32 v4, v4, v3"); A("v_lshlrev_b32 v4, 4, v4")
        A("v_lshlrev_b32 v0, 7, v2"); A("v_add_u32 v4, v4, v0")
        A("s_lshl_b32 s30, s23, 13"); A("v_add_u32 v%d, s30, v4" % (VL + 0)); A("v_xor_b32 v%d, 64, v%d" % (VL + 1, VL + 0))
        A("v_lshlrev_b32 v4, 3, v3"); A("v_lshrrev_b32 v0, 2, v2"); A("v_add_u32 v4, v4, v0"); A("v_mul_u32_u24 v4, 384, v4")
        A("v_and_b32 v0, 3, v2"); A("v_lshlrev_b32 v0, 3, v0"); A("v_add_u32 v4, v4, v0")
        A("v_add_u32 v4, %d, v4" % s.XREG)
        A("v_lshrrev_b32 v0, 3, v2"); A("v_and_b32 v0, 1, v0")
        A("v_and_b32 v3, 1, v3"); A("v_lshlrev_b32 v3, 1, v3"); A("v_or_b32 v0, v0, v3")
        for u in range(2):
            A("s_lshl_b32 s30, s24, 1"); A("s_add_u32 s30, s30, %d" % u)
            A("v_xor_b32 v3, s30, v0"); A("v_lshlrev_b32 v3, 5, v3"); A("v_add_u32 v%d, v4, v3" % (VL + 2 + u))
        for q in range(1, s.ns):
            for r in range(4): A("v_add_u32 v%d, %d, v%d" % (VL + 4*q + r, q * s.SLOT, VL + r))
        A("s_lshl_b32 s42, s20, 12")
        A("s_mul_i32 s43, s20, 6144"); A("s_add_u32 s43, s43, %d" % s.XREG)
    def epilogue(s, c, opt):
        A = c.A
        F0 = s.F[0]
        QP = F0
        KP = F0 + 16
        VP = F0 + 36
        SS = F0 + 56
        MB = 28
        T = 40
        A("s_nop 7")
        A("v_and_b32 v2, 15, v1"); A("v_lshrrev_b32 v3, 4, v1"); A("v_lshlrev_b32 v3, 2, v3")
        A("v_sub_u32 v2, v2, v3")
        A("v_mov_b32 v4, 0xf149f2ca")
        for kt in range(2):
            for r in range(4):
                A("v_add_u32 v3, %d, v2" % (16 - 16*kt - r))
                A("v_and_b32 v0, 0xfffffff1, v3")
                A("v_cmp_eq_u32 vcc, 0, v0"); A("s_nop 1")
                A("v_cndmask_b32 v%d, v4, 0, vcc" % (MB + 4*kt + r))
        A("s_or_b32 s30, s21, s23"); A("s_cmp_eq_u32 s30, 0"); A("s_cselect_b64 vcc, -1, 0")
        for r in range(4): A("v_cndmask_b32 v%d, v%d, v4, vcc" % (MB + 8 + r, MB + r))
        for mb in range(4):
            for u in range(2):
                a = s.aq(u, mb)
                A("v_cvt_pk_bf16_f32 v%d, v%d, v%d" % (QP + 4*mb + 2*u, a, a+1)); A("v_cvt_pk_bf16_f32 v%d, v%d, v%d" % (QP + 4*mb + 2*u + 1, a+2, a+3))
        for hb in range(5):
            for u in range(2):
                a = s.ak(u, hb)
                A("v_cvt_pk_bf16_f32 v%d, v%d, v%d" % (KP + 4*hb + 2*u, a, a+1)); A("v_cvt_pk_bf16_f32 v%d, v%d, v%d" % (KP + 4*hb + 2*u + 1, a+2, a+3))
        for u in range(2):
            for hb in range(5):
                a = s.av(u, hb)
                A("v_cvt_pk_bf16_f32 v%d, v%d, v%d" % (VP + 10*u + 2*hb, a, a+1)); A("v_cvt_pk_bf16_f32 v%d, v%d, v%d" % (VP + 10*u + 2*hb + 1, a+2, a+3))
        A("s_nop 1")
        for mb in range(4):
            for kt in range(2):
                d = SS + 8*mb + 4*kt
                A("v_mfma_f32_16x16x32_bf16 v[%d:%d], v[%d:%d], v[%d:%d], 0" % (d, d+3, KP + 4*(mb+kt), KP + 4*(mb+kt) + 3, QP + 4*mb, QP + 4*mb + 3))
        A("s_nop 7")
        A("s_mov_b32 s30, 0x3e8293ee")
        for mb in range(4):
            for kt in range(2):
                for r in range(4):
                    d = SS + 8*mb + 4*kt + r
                    m = MB + (8 + r if (mb == 0 and kt == 0) else 4*kt + r)
                    A("v_fma_f32 v%d, v%d, s30, v%d" % (d, d, m))
        for mb in range(4):
            d = SS + 8*mb; t = T + mb
            A("v_max3_f32 v%d, v%d, v%d, v%d" % (t, d, d+1, d+2)); A("v_max3_f32 v%d, v%d, v%d, v%d" % (t, t, d+3, d+4))
            A("v_max3_f32 v%d, v%d, v%d, v%d" % (t, t, d+5, d+6)); A("v_max_f32 v%d, v%d, v%d" % (t, t, d+7))
        def xlane(op):
            for mb in range(4): A("v_mov_b32 v%d, v%d" % (T + 4 + mb, T + mb))
            A("s_nop 1")
            for mb in range(4): A("v_permlane32_swap_b32 v%d, v%d" % (T + mb, T + 4 + mb))
            A("s_nop 1")
            for mb in range(4): A("%s v%d, v%d, v%d" % (op, T + mb, T + mb, T + 4 + mb))
            for mb in range(4): A("v_mov_b32 v%d, v%d" % (T + 4 + mb, T + mb))
            A("s_nop 1")
            for mb in range(4): A("v_permlane16_swap_b32 v%d, v%d" % (T + mb, T + 4 + mb))
            A("s_nop 1")
            for mb in range(4): A("%s v%d, v%d, v%d" % (op, T + mb, T + mb, T + 4 + mb))
        xlane("v_max_f32")
        for mb in range(4):
            for i in range(8): A("v_sub_f32 v%d, v%d, v%d" % (SS + 8*mb + i, SS + 8*mb + i, T + mb))
        for mb in range(4):
            for i in range(8): A("v_exp_f32 v%d, v%d" % (SS + 8*mb + i, SS + 8*mb + i))
        A("s_nop 0")
        for mb in range(4):
            d = SS + 8*mb; t = T + mb
            A("v_add_f32 v%d, v%d, v%d" % (t, d, d+1))
            for i in range(2, 8): A("v_add_f32 v%d, v%d, v%d" % (t, t, d+i))
        xlane("v_add_f32")
        for mb in range(4): A("v_rcp_f32 v%d, v%d" % (T + mb, T + mb))
        A("s_nop 0")
        for mb in range(4):
            for i in range(8): A("v_mul_f32 v%d, v%d, v%d" % (SS + 8*mb + i, SS + 8*mb + i, T + mb))
        PP = QP
        for mb in range(4):
            for i in range(4): A("v_cvt_pk_bf16_f32 v%d, v%d, v%d" % (PP + 4*mb + i, SS + 8*mb + 2*i, SS + 8*mb + 2*i + 1))
        A("s_nop 1")
        for mb in range(4):
            for u in range(2):
                d = SS + 8*mb + 4*u; va = VP + 10*u + 2*mb
                A("v_mfma_f32_16x16x32_bf16 v[%d:%d], v[%d:%d], v[%d:%d], 0" % (d, d+3, va, va+3, PP + 4*mb, PP + 4*mb + 3))
        A("s_nop 7")
        A("v_lshlrev_b32 v2, 4, v1"); A("s_lshl_b32 s30, s23, 12"); A("v_add_u32 v2, s30, v2")
        A("s_lshl_b32 s44, s21, 5"); A("s_lshl_b32 s30, s22, 1"); A("s_add_u32 s44, s44, s30"); A("s_add_u32 s44, s44, s24")
        A("s_lshl_b32 s44, s44, 13"); A("s_add_u32 s44, s44, 0x%x" % WS_O)
        sc = " sc1" if opt.get("sc1_store") else ""
        for mb in range(4):
            d = SS + 8*mb; o = KP + 4*mb
            for i in range(4): A("v_cvt_pk_bf16_f32 v%d, v%d, v%d" % (o + i, d + 2*i, d + 2*i + 1))
            A("buffer_store_dwordx4 v[%d:%d], v2, s[%d:%d], s44 offen offset:%d%s" % (o, o+3, s.SWS, s.SWS+3, mb * 1024, sc))

def gen_q(opt):
    c = Code(); A = c.A; R = QRound()
    stamp(c, 0, opt)
    A("s_cmp_ge_u32 s2, 256"); A("s_cbranch_scc1 Q_END")
    A("s_load_dwordx4 s[28:31], s[0:1], 0")
    A("s_load_dwordx2 s[34:35], s[0:1], 64")
    A("s_load_dwordx2 s[38:39], s[0:1], 88")
    A("v_lshrrev_b32 v2, 6, v0")
    A("s_waitcnt lgkmcnt(0)")
    srd(c, R.SX, 28, 2048*1024*2); srd(c, R.SW, 30, 1024*3072*2); srd(c, R.SWS, 38, 0x10000000); srd(c, R.SG, 34, 2048)
    ids(c)
    R.setup(c)
    mainloop(c, R, opt)
    R.epilogue(c, opt)
    stamp(c, 3, opt)
    stamp_out(c, 5, opt, "Q")
    A("Q_END:")
    A("s_endpgm")
    return c.text()

class KRound:
    SLOT = 32768; XREG = 16384
    nd = 8; nm = 16; rd_end = 9
    VD = 5; VL = 12; VB = 40; F = [56, 88]; ACC = 120; ACC2 = 184
    SX, SW, SW2, SO = 4, 8, 12, 16
    def __init__(s, typ, KA=1024, ns=4):
        s.typ = typ; s.KA = KA; s.ns = ns
        s.nh = KA // 64 if typ == 0 else (3584 - KA) // 64
        s.nst = s.nh + (16 if typ == 0 else 0)
    def acc(s, t, mb, second=False): return (s.ACC2 if second else s.ACC) + (t * 4 + mb) * 4
    def fx(s, fs, mb): return s.F[fs] + mb * 4
    def fw(s, fs, t): return s.F[fs] + 16 + t * 4
    def dma_raw(s, st):
        q = st % s.ns; tag = ("st", st); out = []
        opart = st >= s.nh
        if not opart: xo = "s_add_u32 s25, s49, %d" % (st * 16384)
        else: xo = "s_add_u32 s25, s50, %d" % ((st - s.nh) * 16384)
        for i in range(4):
            setup = ["s_add_u32 m0, s42, %d" % (q * s.SLOT), xo] if i == 0 else []
            out.append((setup, "buffer_load_dwordx4 v%d, s[%d:%d], s25 offen offset:%d lds" % (s.VD, s.SX, s.SX + 3, i * 1024), tag))
        krow = (st * 64 + (0 if s.typ == 0 else s.KA)) if not opart else (st - s.nh) * 64
        sw = s.SW2 if opart else s.SW
        for i in range(4):
            setup = ["s_add_u32 m0, s43, %d" % (q * s.SLOT), "s_mov_b32 s26, %d" % (krow * 2048)] if i == 0 else []
            out.append((setup, "buffer_load_dwordx4 v%d, s[%d:%d], s26 offen offset:%d lds" % (s.VD + 1 + i, sw, sw + 3, i * 1024), tag))
        return out
    def reads(s, st, kk, fs):
        q = st % s.ns
        b = s.VL + 5 * (q // 2); so = (q & 1) * s.SLOT
        def wr(t):
            off = so + kk * 32 * 256; d = s.fw(fs, t)
            return ["ds_read_b64_tr_b16 v[%d:%d], v%d offset:%d" % (d, d+1, b + 1 + t, off),
                    "ds_read_b64_tr_b16 v[%d:%d], v%d offset:%d" % (d+2, d+3, b + 1 + t, off + 16*256)]
        def xr(mb): return ["ds_read_b128 v[%d:%d], v%d offset:%d" % (s.fx(fs,mb), s.fx(fs,mb)+3, b, so + kk * 8192 + mb * 1024)]
        r = xr(0) + wr(0) + xr(1) + xr(2) + xr(3)
        for t in range(1, 4): r += wr(t)
        return r
    def mfmas(s, st, kk, fs):
        second = st >= s.nh
        first = (st == 0 or st == s.nh) and kk == 0
        m = []
        for t in range(4):
            for mb in range(4):
                a = s.acc(t, mb, second)
                if first: cs = ("v[%d:%d]" % (s.VB + 4*t, s.VB + 4*t + 3)) if (s.typ == 1) else "0"
                else: cs = "v[%d:%d]" % (a, a+3)
                m.append("v_mfma_f32_16x16x32_bf16 v[%d:%d], v[%d:%d], v[%d:%d], %s" % (a, a+3, s.fw(fs,t), s.fw(fs,t)+3, s.fx(fs,mb), s.fx(fs,mb)+3, cs))
        return m
    def after_stage(s, c, st): pass
    def after_prologue_dma(s, c):
        A = c.A
        if s.typ == 1:
            vm_wait(c, lambda t: t == "bias")
            for t in range(4):
                for h in range(2):
                    src = s.F[1] + 2*t + h
                    A("v_lshlrev_b32 v%d, 16, v%d" % (s.VB + 4*t + 2*h, src))
                    A("v_and_b32 v%d, 0xffff0000, v%d" % (s.VB + 4*t + 2*h + 1, src))
    def setup(s, c):
        A = c.A; VD = s.VD; VL = s.VL
        A("v_lshlrev_b32 v%d, 4, v1" % VD)
        A("s_lshl_b32 s30, s20, 12")
        A("v_add_u32 v%d, s30, v%d" % (VD, VD))
        A("s_lshl_b32 s42, s20, 12")
        A("s_add_u32 s43, s42, %d" % s.XREG)
        A("s_mul_i32 s49, s21, %d" % (112 * 8192));
        if s.typ == 1: A("s_add_u32 s49, s49, %d" % (s.KA // 32 * 8192))
        A("s_lshl_b32 s50, s21, 18"); A("s_add_u32 s50, s50, 0x%x" % WS_O)
        A("v_lshrrev_b32 v2, 4, v1"); A("v_and_b32 v3, 15, v1")
        A("s_lshl_b32 s31, s22, 8")
        for i in range(4):
            row7 = (4 * i) & 7
            A("v_add_u32 v4, %d, v2" % row7); A("v_lshlrev_b32 v4, 1, v4"); A("v_xor_b32 v4, v4, v3"); A("v_lshlrev_b32 v4, 4, v4")
            A("s_lshl_b32 s30, s20, 4"); A("s_add_u32 s30, s30, %d" % (4 * i))
            A("v_add_u32 v0, s30, v2"); A("v_lshlrev_b32 v0, 11, v0"); A("v_add_u32 v4, v4, v0"); A("v_add_u32 v4, s31, v4")
            A("v_subrev_u32 v%d, %d, v4" % (VD + 1 + i, i * 1024))
        A("v_lshlrev_b32 v4, 4, v1"); A("s_lshl_b32 s30, s23, 12"); A("v_add_u32 v%d, s30, v4" % VL)
        A("v_and_b32 v2, 15, v1"); A("v_lshrrev_b32 v3, 4, v1")
        A("v_lshlrev_b32 v4, 2, v3"); A("v_lshrrev_b32 v0, 2, v2"); A("v_add_u32 v4, v4, v0")
        A("v_and_b32 v0, 7, v4")
        A("v_lshlrev_b32 v4, 8, v4"); A("v_and_b32 v2, 3, v2"); A("v_lshlrev_b32 v2, 3, v2"); A("v_add_u32 v4, v4, v2")
        A("v_add_u32 v4, %d, v4" % s.XREG)
        for t in range(4):
            A("s_lshl_b32 s30, s24, 2"); A("s_add_u32 s30, s30, %d" % t)
            A("v_xor_b32 v2, s30, v0"); A("v_lshlrev_b32 v2, 5, v2"); A("v_add_u32 v%d, v4, v2" % (VL + 1 + t))
        for q2 in range(1, (s.ns + 1) // 2):
            for r in range(5): A("v_add_u32 v%d, %d, v%d" % (VL + 5*q2 + r, q2 * 2 * s.SLOT, VL + r))
        A("v_and_b32 v2, 15, v1"); A("s_lshl_b32 s30, s21, 7"); A("s_lshl_b32 s31, s23, 6"); A("s_add_u32 s30, s30, s31")
        A("v_add_u32 v2, s30, v2"); A("v_lshlrev_b32 v2, 2, v2"); A("s_mov_b32 s30, 0x%x" % WS_G)
        for mb in range(4):
            A("buffer_load_dword v%d, v2, s[%d:%d], s30 offen offset:%d" % (32 + mb, s.SX, s.SX + 3, mb * 64)); c.vm.append("g")
        if s.typ == 1:
            A("v_lshrrev_b32 v3, 4, v1"); A("v_lshlrev_b32 v3, 3, v3")
            A("s_lshl_b32 s30, s22, 8"); A("s_lshl_b32 s31, s24, 7"); A("s_add_u32 s30, s30, s31")
            A("v_add_u32 v3, s30, v3")
            for t in range(4):
                A("buffer_load_dwordx2 v[%d:%d], v3, s[52:55], 0 offen offset:%d" % (s.F[1] + 2*t, s.F[1] + 2*t + 1, 32 * t)); c.vm.append("bias")
    def epilogue(s, c, opt):
        A = c.A
        A("s_nop 7")
        vm_wait(c, lambda t: t == "g")
        for mb in range(4):
            A("v_sub_f32 v%d, 1.0, v%d" % (36 + mb, 32 + mb))
            A("v_cvt_pk_bf16_f32 v%d, v%d, v%d" % (36 + mb, 36 + mb, 36 + mb)); A("v_lshlrev_b32 v%d, 16, v%d" % (36 + mb, 36 + mb))
        A("v_lshlrev_b32 v2, 4, v1")
        A("s_lshl_b32 s44, s21, 3"); A("s_add_u32 s44, s44, s22"); A("s_lshl_b32 s44, s44, 2"); A("s_add_u32 s44, s44, s20")
        A("s_lshl_b32 s44, s44, 14"); A("s_add_u32 s44, s44, 0x%x" % WS_P)
        if s.typ == 0:
            for t in range(4):
                A("s_add_u32 s45, s44, %d" % (t * 4096))
                for mb in range(4):
                    a = s.acc(t, mb); b = s.acc(t, mb, True)
                    for r in range(4):
                        A("v_mul_f32 v%d, v%d, v%d" % (a + r, a + r, 36 + mb))
                        A("v_fmac_f32 v%d, v%d, v%d" % (a + r, b + r, 32 + mb))
                    A("buffer_store_dwordx4 v[%d:%d], v2, s[%d:%d], s45 offen offset:%d sc1" % (a, a+3, s.SX, s.SX+3, mb * 1024))
        else:
            P = s.ACC2
            for t in range(4):
                A("s_add_u32 s45, s44, %d" % (t * 4096))
                for mb in range(4):
                    p = P + (t * 4 + mb) * 4
                    A("buffer_load_dwordx4 v[%d:%d], v2, s[%d:%d], s45 offen offset:%d sc1" % (p, p+3, s.SX, s.SX+3, mb * 1024)); c.vm.append(("p", t, mb))
            A("v_and_b32 v2, 15, v1"); A("v_lshrrev_b32 v3, 4, v1")
            A("s_lshl_b32 s30, s21, 7"); A("s_lshl_b32 s31, s23, 6"); A("s_add_u32 s30, s30, s31")
            A("v_add_u32 v2, s30, v2"); A("v_lshlrev_b32 v2, 11, v2"); A("v_lshlrev_b32 v3, 4, v3"); A("v_add_u32 v2, v2, v3")
            A("s_lshl_b32 s30, s22, 8"); A("s_lshl_b32 s31, s24, 7"); A("s_add_u32 s30, s30, s31"); A("v_add_u32 v2, s30, v2")
            T = s.F[0]
            k = 0
            for mb in range(4):
                if mb: A("v_add_u32 v2, 0x8000, v2")
                for pr in range(2):
                    d = T + (k % 8) * 4; k += 1
                    for h in range(2):
                        t = 2*pr + h
                        vm_wait(c, lambda x, t=t, mb=mb: x == ("p", t, mb))
                        a = s.acc(t, mb); p = P + (t * 4 + mb) * 4
                        for r in range(4): A("v_fma_f32 v%d, v%d, v%d, v%d" % (a + r, a + r, 36 + mb, p + r))
                        A("v_cvt_pk_bf16_f32 v%d, v%d, v%d" % (d + 2*h, a, a+1)); A("v_cvt_pk_bf16_f32 v%d, v%d, v%d" % (d + 2*h + 1, a+2, a+3))
                    A("s_nop 1")
                    A("v_permlane32_swap_b32 v%d, v%d" % (d, d+2)); A("v_permlane32_swap_b32 v%d, v%d" % (d+1, d+3))
                    A("s_nop 1")
                    A("v_permlane16_swap_b32 v%d, v%d" % (d, d+2)); A("v_permlane16_swap_b32 v%d, v%d" % (d+1, d+3))
                    A("s_nop 1")
                    A("buffer_store_dwordx4 v[%d:%d], v2, s[%d:%d], 0 offen offset:%d" % (d, d+3, s.SO, s.SO+3, pr * 64))

def gen_k2(typ, opt):
    c = Code(); A = c.A; R = KRound(typ, opt.get("KA", 1024), opt.get("ns", 4))
    name = "KA" if typ == 0 else "KB"
    stamp(c, 0, opt)
    A("s_cmp_ge_u32 s2, 128"); A("s_cbranch_scc1 %s_END" % name)
    A("s_load_dwordx2 s[28:29], s[0:1], 16")
    A("s_load_dwordx4 s[32:35], s[0:1], 48")
    A("s_load_dwordx2 s[36:37], s[0:1], 72")
    A("s_load_dwordx2 s[38:39], s[0:1], 88")
    A("v_lshrrev_b32 v2, 6, v0"); A("v_and_b32 v1, 63, v0"); A("v_readfirstlane_b32 s20, v2")
    A("s_and_b32 s27, s2, 7"); A("s_lshr_b32 s30, s2, 3")
    A("s_lshl_b32 s21, s27, 1"); A("s_lshr_b32 s31, s30, 3"); A("s_add_u32 s21, s21, s31"); A("s_and_b32 s22, s30, 7")
    A("s_and_b32 s23, s20, 1"); A("s_lshr_b32 s24, s20, 1")
    A("s_waitcnt lgkmcnt(0)")
    srd(c, R.SX, 38, 0x10000000); srd(c, R.SW, 32, 3584*1024*2); srd(c, R.SW2, 28, 1024*1024*2); srd(c, R.SO, 36, 2048*1024*2)
    srd(c, 52, 34, 2048)
    R.setup(c)
    opt2 = dict(opt)
    mainloop(c, R, opt2)
    R.epilogue(c, opt)
    stamp(c, 3, opt)
    stamp_out(c, 5, opt, name)
    A("%s_END:" % name)
    A("s_endpgm")
    return c.text()
```

```python
import sys; sys.path.insert(0, "gen")
import rounds
NAME = "gated_mix__sliding_local_dilated__dense_activation_squared_relu__prompt"
hdr = open("cdna_kernels/%s.s.ref" % NAME).read().split("; Override launch")[0]
KD = """
.section .rodata,"a"
.p2align 6
.amdhsa_kernel {name}
  .amdhsa_next_free_vgpr {vgpr}
  .amdhsa_next_free_sgpr 96
  .amdhsa_accum_offset {acc}
  .amdhsa_group_segment_fixed_size 0
  .amdhsa_kernarg_size 96
  .amdhsa_user_sgpr_count 2
  .amdhsa_user_sgpr_kernarg_segment_ptr 1
  .amdhsa_system_sgpr_workgroup_id_x 1
.end_amdhsa_kernel
.text
"""
def kern(name, body, vgpr=256, acc=256):
    return ".globl %s\n.p2align 8\n.type %s,@function\n%s:\n%s\n%s" % (name, name, name, body, KD.format(name=name, vgpr=vgpr, acc=acc))
opt = {}
ks = [("h_kernel", rounds.gen_h(opt), 256, 3*45056), ("q_kernel", rounds.gen_q(opt), 256, 3*45056),
      ("ka_kernel", rounds.gen_k2(0, opt), 128, 4*32768), ("kb_kernel", rounds.gen_k2(1, opt), 128, 4*32768)]
txt = hdr
for n, b, g, l in ks: txt += "; @launch kernel=%s grid=(%d,1,1) block=(256,1,1) lds=%d\n" % (n, g, l)
txt += '.amdgcn_target "amdgcn-amd-amdhsa--gfx950"\n.text\n'
for n, b, g, l in ks: txt += kern(n, b)
out = sys.argv[1] if len(sys.argv) > 1 else "cdna_kernels/%s.s" % NAME
open(out, "w").write(txt)
print("written", out, len(txt))
```
